```python
import torch

def _softmax(x, axis=-1):
    return torch.softmax(x, dim=axis)
def _gelu(x):
    return torch.nn.functional.gelu(x, approximate="tanh")
def _silu(x):
    return torch.nn.functional.silu(x)
def _sigmoid(x):
    return torch.sigmoid(x)
def _layernorm(x, axis=-1, eps=1e-5):
    m = x.mean(dim=axis, keepdim=True)
    v = x.var(dim=axis, keepdim=True, unbiased=False)
    return (x - m) / torch.sqrt(v + eps)
def _scatter_add(tgt, idx, src, axis=0):
    return tgt.clone().index_add_(axis, idx, src)
def _segment_sum(src, seg, n):
    out = torch.zeros((n,) + src.shape[1:], dtype=src.dtype)
    return out.index_add_(0, seg, src)
def _pad(x, pw):
    flat = tuple(v for pair in reversed(pw) for v in pair)
    return torch.nn.functional.pad(x, flat)

kernel_name = 'parallel_sum__softmax_full_mha__mixer_s_mlp__prompt'

def setup_inputs():

    _w = (lambda a: (lambda t: t.to(torch.bfloat16) if t.is_floating_point() else t)(torch.as_tensor(a)))
    def _A_setup():
        B, S, D = 1, 2048, 576
        return {
            "x": _w((lambda *s: torch.randn(*s, dtype=torch.bfloat16) * 0.05)(B, S, D)),
            "wqkv": _w((lambda *s: torch.randn(*s, dtype=torch.bfloat16) * 0.1)(D, 3 * D)),
            "wo": _w((lambda *s: torch.randn(*s, dtype=torch.bfloat16) * 0.05)(D, D)),
        }
    _A_in = _A_setup()

    def _B_setup():
        B, S, D, F = 1, 2048, 576, 4608
        return {
            "x":  _w((lambda *s: torch.randn(*s, dtype=torch.bfloat16) * 0.05)(B, S, D)),
            "w1": _w((lambda *s: torch.randn(*s, dtype=torch.bfloat16) * 3.2)(D, D) * (D ** -0.5)),
            "w2": _w((lambda *s: torch.randn(*s, dtype=torch.bfloat16) * 3.2)(D, D) * (D ** -0.5)),
            "w3": _w((lambda *s: torch.randn(*s, dtype=torch.bfloat16) * 3.2)(D, F) * (D ** -0.5)),
            "w4": _w((lambda *s: torch.randn(*s, dtype=torch.bfloat16) * 3.2)(F, D) * (F ** -0.5)),
        }
    _B_in = _B_setup()

    return {
        "A_x": _A_in["x"],
        "A_wqkv": _A_in["wqkv"],
        "A_wo": _A_in["wo"],
        "B_x": _B_in["x"],
        "B_w1": _B_in["w1"],
        "B_w2": _B_in["w2"],
        "B_w3": _B_in["w3"],
        "B_w4": _B_in["w4"],
    }

def reference(A_x, A_wqkv, A_wo, B_x, B_w1, B_w2, B_w3, B_w4):
    def _A_ref(x, wqkv, wo):
        B, S, D = x.shape
        H = 32; Dh = D // H
        qkv = (lambda x, *d: x.permute(*d))((x @ wqkv).reshape(B, S, 3, H, Dh), 2, 0, 3, 1, 4)
        q, k, v = qkv[0], qkv[1], qkv[2]
        scale = Dh ** -0.5
        scores = torch.einsum("bhqd,bhkd->bhqk", q, k) * scale
        p = _softmax(scores, axis=-1)
        o = torch.einsum("bhqk,bhkd->bhqd", p, v)
        return (lambda x, *d: x.permute(*d))(o, 0, 2, 1, 3).reshape(B, S, D) @ wo

    def _B_ref(x, w1, w2, w3, w4):
        B, S, D = x.shape
        h = _gelu(_layernorm(x, axis=-1) @ w1)
        c = D // 4
        g0 = _pad(h[:, :, 0*c:1*c], ((0, 0), (1, 0), (0, 0)))[:, :S, :]
        g1 = _pad(h[:, :, 1*c:2*c], ((0, 0), (0, 1), (0, 0)))[:, 1:, :]
        g2 = _pad(h[:, :, 2*c:3*c], ((0, 0), (2, 0), (0, 0)))[:, :S, :]
        g3 = _pad(h[:, :, 3*c:   ], ((0, 0), (0, 2), (0, 0)))[:, 2:, :]
        hs = torch.concatenate([g0, g1, g2, g3], axis=-1) @ w2
        x1 = x + hs
        h2 = _gelu(_layernorm(x1, axis=-1) @ w3) @ w4
        return x1 + h2

    x = A_x
    xn = _layernorm(x, axis=-1)
    return x + _A_ref(xn, A_wqkv, A_wo) + _B_ref(xn, B_w1, B_w2, B_w3, B_w4)
```

```python
import re

class Asm:
    def __init__(self):
        self.lines = []
        self.trace = []
        self.tracing = True
        self.vmq = []
    def resolve(self, l):
        if l.startswith("@waitvm"):
            tags = l.split()[1:]
            idx = max(i for i, t in enumerate(self.vmq) if t in tags)
            n = len(self.vmq) - 1 - idx
            assert n <= 63, (l, n)
            return f"s_waitcnt vmcnt({n})"
        if l.startswith(("buffer_", "global_")):
            self.vmq.append(l.split(";#")[1].strip() if ";#" in l else "")
            return l.split(";#")[0].strip()
        return l
    def __call__(self, s):
        for l in s.split("\n"):
            l = l.strip()
            if not l: continue
            l = self.resolve(l)
            self.lines.append(l)
            if self.tracing: self.trace.append(l)
    def fork(self):
        b = Asm(); b.trace = list(self.trace); b.vmq = list(self.vmq); return b
    def many(self, ls):
        for l in ls: self(l)
    def loop(self, label, body, tail):
        first = [self.resolve(l) for l in body]
        second = [self.resolve(l) for l in body]
        third = [self.resolve(l) for l in body]
        assert second == third
        for i, (x, y) in enumerate(zip(first, second)):
            if x != y:
                n = [int(re.fullmatch(r"s_waitcnt vmcnt\((\d+)\)", z).group(1)) for z in (x, y)]
                first[i] = f"s_waitcnt vmcnt({min(n)})"
        self.lines.append(label + ":")
        self.lines += first + tail
        if self.tracing: self.trace += first + tail + first + tail
    def text(self):
        return "\n".join(l if l.endswith(":") or l.startswith(".") else " " + l for l in self.lines) + "\n"

def vr(b, n=1, p="v"): return f"{p}{b}" if n == 1 else f"{p}[{b}:{b+n-1}]"
def ar(b, n=1): return vr(b, n, "a")
def sr(b, n=1): return vr(b, n, "s")

_REG = re.compile(r"^-?\|?(?:abs\()?([vas])(?:(\d+)|\[(\d+):(\d+)\])\)?\|?$")
def regs(op):
    op = op.strip()
    if op in ("vcc", "exec"): return {(op, 0), (op, 1)}
    if op in ("vcc_lo", "exec_lo"): return {(op[:-3], 0)}
    if op in ("vcc_hi", "exec_hi"): return {(op[:-3], 1)}
    if op == "m0": return {("m0", 0)}
    m = _REG.match(op)
    if not m: return set()
    if m.group(2) is not None: return {(m.group(1), int(m.group(2)))}
    return {(m.group(1), i) for i in range(int(m.group(3)), int(m.group(4)) + 1)}

TRANS = ("v_exp_", "v_log_", "v_rcp_", "v_rsq_", "v_sqrt_", "v_sin_", "v_cos_")
class I:
    def __init__(self, text):
        self.text = text
        t = text.split(";")[0].strip()
        parts = t.split(None, 1)
        self.op = parts[0]
        rest = parts[1] if len(parts) > 1 else ""
        ops = [o.strip() for o in rest.split(",")] if rest else []
        self.mods = ""
        if ops:
            last = ops[-1].split(None, 1)
            if last:
                ops[-1] = last[0]; self.mods = last[1] if len(last) > 1 else ""
        self.ops = ops
        op = self.op
        R = lambda *ix: set().union(*[regs(ops[i]) for i in ix if i < len(ops)]) if ix else set()
        allfrom = lambda k: R(*range(k, len(ops)))
        self.w, self.r = set(), set()
        self.mfma = op.startswith("v_mfma") or op.startswith("v_smfmac")
        self.valu = op.startswith("v_") and not self.mfma
        self.trans = op.startswith(TRANS)
        self.ds = op.startswith("ds_"); self.vmem = op.startswith(("buffer_", "global_"))
        self.salu = op.startswith("s_")
        self.ws = 1
        self.load_dst = set(); self.store_data = set(); self.dma = False
        if op == "s_nop": self.ws = int(ops[0], 0) + 1
        if self.mfma:
            self.w = R(0); self.a = R(1); self.b = R(2); self.c = R(3); self.r = self.a | self.b | self.c
            self.passes = 8 if "32x32" in op else 4
        elif self.valu:
            if op.startswith("v_permlane") and "swap" in op: self.w = R(0, 1); self.r = R(0, 1)
            elif op.startswith("v_cmp"): self.w = R(0); self.r = allfrom(1)
            elif re.match(r"v_(add|sub|subrev|addc|subb)_co_", op): self.w = R(0, 1); self.r = allfrom(2)
            else:
                self.w = R(0); self.r = allfrom(1)
                if op.startswith(("v_fmac", "v_dot2c", "v_writelane")): self.r |= R(0)
            if op.startswith("v_cndmask") and len(ops) == 3: self.r |= regs("vcc")
        elif self.ds:
            if op.startswith("ds_read") or "permute" in op or "swizzle" in op: self.load_dst = R(0); self.r = allfrom(1)
            else: self.r = allfrom(0); self.store_data = allfrom(1)
        elif self.vmem:
            lds = " lds" in (" " + self.mods) or "_lds_" in op
            if lds: self.dma = True; self.r = allfrom(0) | {("m0", 0)}
            elif "load" in op: self.load_dst = R(0); self.r = allfrom(1)
            elif op.startswith("buffer_store"): self.store_data = R(0); self.r = allfrom(0)
            elif op.startswith("global_store"): self.store_data = R(1); self.r = allfrom(0)
            else: self.r = allfrom(0)
        elif self.salu:
            if op.startswith(("s_cmp", "s_cbranch", "s_branch", "s_waitcnt", "s_barrier", "s_nop", "s_setprio", "s_endpgm", "s_sleep", "s_setpc")):
                self.r = allfrom(0)
            elif op.startswith(("s_load", "s_memtime", "s_memrealtime")): self.load_dst = R(0); self.r = allfrom(1)
            else:
                self.w = R(0); self.r = allfrom(1)
                if "saveexec" in op: self.w |= regs("exec")

def check(trace, name=""):
    ins = [I(l) for l in trace if not (l.endswith(":") or l.startswith(".") or l.startswith(";"))]
    errs = []
    def need(i, j, n, why):
        d = sum(x.ws for x in ins[i+1:j])
        if d < n: errs.append(f"{name}: {why}: need {n} got {d}\n    [{i}] {ins[i].text}\n    [{j}] {ins[j].text}")
    isv = lambda s: {x for x in s if x[0] in "va"}
    iss = lambda s: {x for x in s if x[0] in ("s", "vcc")}
    for j, c in enumerate(ins):
        d = 0
        for i in range(j - 1, -1, -1):
            p = ins[i]
            if d >= 20: break
            if p.valu:
                vw = isv(p.w)
                if c.mfma and vw & c.r: need(i, j, 2, "VALU->MFMA operand")
                if p.op.startswith("v_dot2") and vw & (c.r | c.w) and (c.valu or c.mfma or c.vmem or c.ds):
                    chain = c.op == p.op and vw & regs(c.ops[-1]) and not vw & (regs(c.ops[1]) | regs(c.ops[2]))
                    if not chain: need(i, j, 3, "dot2->other")
                if p.trans and c.valu and not c.trans and vw & c.r: need(i, j, 1, "trans->VALU")
                if c.op.startswith("v_permlane") and vw & c.r: need(i, j, 2, "VALU->permlane")
                if c.op.startswith(("v_readlane", "v_readfirstlane")) and vw & c.r: need(i, j, 1, "VALU->readlane")
                if "dpp" in c.op or "row_" in c.mods or "quad_perm" in c.mods:
                    if vw & c.r: need(i, j, 2, "VALU->DPP")
                sw = iss(p.w)
                if sw and c.valu and sw & c.r: need(i, j, 2, "VALU sgpr->VALU")
                if sw and c.vmem and sw & c.r: need(i, j, 5, "VALU sgpr->VMEM")
            if p.mfma:
                n = {8: 12, 4: 8}[p.passes]
                if c.mfma:
                    if p.w & (c.a | c.b): need(i, j, n, "MFMA->MFMA A/B")
                    if p.w & c.c and not (p.w == c.c and p.passes == c.passes): need(i, j, n - 2, "MFMA->MFMA C overlap")
                elif c.valu:
                    if p.w & (c.r | c.w): need(i, j, n, "MFMA->VALU")
                    if p.c & c.w: need(i, j, {8: 7, 4: 3}[p.passes], "MFMA C WAR")
                elif (c.vmem or c.ds) and p.w & (c.r | c.load_dst): need(i, j, n, "MFMA->mem")
            if p.salu and ("m0", 0) in p.w and c.dma: need(i, j, 1, "m0->DMA")
            if p.vmem and len(p.store_data) >= 3 and c.valu and p.store_data & c.w: need(i, j, 2, "store data WAR")
            d += p.ws
    vm, lg = [], []
    for j, c in enumerate(ins):
        if c.op == "s_waitcnt":
            m = re.search(r"vmcnt\((\d+)\)", c.text)
            if m:
                n = int(m.group(1)); vm = vm[len(vm) - n:] if n < len(vm) else vm
                if n == 0: vm = []
            m = re.search(r"lgkmcnt\((\d+)\)", c.text)
            if m:
                n = int(m.group(1))
                if n > 0 and any(x[1] for x in lg): errs.append(f"{name}: counted lgkmcnt with SMEM outstanding at [{j}]")
                lg = lg[len(lg) - n:] if n < len(lg) else lg
                if n == 0: lg = []
            continue
        touched = c.r | c.w | c.load_dst
        for q, nm in ((vm, "vm"), (lg, "lgkm")):
            for e in q:
                if e[0] & (touched if not (c.vmem and nm == "vm") else c.r): errs.append(f"{name}: {nm} result not waited: [{e[2]}] {ins[e[2]].text}\n    used by [{j}] {c.text}")
        if c.vmem: vm.append((c.load_dst, False, j))
        if c.ds: lg.append((c.load_dst, False, j))
        if c.salu and c.load_dst: lg.append((c.load_dst, True, j))
        if len(vm) > 63: errs.append(f"{name}: more than 63 vm ops outstanding at [{j}] {c.text}")
    return errs
```

```python
from asmlib import *

MF16 = "v_mfma_f32_32x32x16_bf16"
MF8 = "v_mfma_f32_32x32x8_bf16"
STAGE = 24576
NSTAGE = 6

def flat(x):
    out = []
    for e in x:
        if isinstance(e, (list, tuple)): out += flat(e)
        else: out.append(e)
    return out

def spread(gaps, items, g0, g1):
    n = len(items); k = g1 - g0
    for i, it in enumerate(items):
        gaps.setdefault(g0 + i * k // n, []).append(it)

def tr_reads(FR, trb, n, T, r2):
    b = n // 4; off = 8192 * (b % 3) + 2048 * (n % 4); f = FR + 8 * (n % 3) + 4 * T
    return [f"ds_read_b64_tr_b16 {vr(f, 2)}, v{trb + T} offset:{off}",
            f"ds_read_b64_tr_b16 {vr(f + 2, 2)}, v{trb + T} offset:{off + r2}"]

def first_reads(FR, trb, r2):
    return flat([tr_reads(FR, trb, n, T, r2) for n in (0, 1) for T in (0, 1)])

def steps(n0, n1, total, FR, trb, r2, breg, acc, swap, gaps, pre=None, wtag=lambda st: f"W{st}", czero=True):
    out = []
    for n in range(n0, n1):
        if n % 12 == 10 and n + 2 < total:
            st = n // 12 + 1
            d = STAGE if st % NSTAGE else -(NSTAGE - 1) * STAGE
            out += [f"@waitvm {wtag(st)}", "s_barrier",
                    f"v_add_u32 v{trb}, {d & 0xffffffff:#x}, v{trb}", f"v_add_u32 v{trb + 1}, {d & 0xffffffff:#x}, v{trb + 1}"]
        out += flat((pre or {}).get(n, []))
        out.append(f"s_waitcnt lgkmcnt({4 if n + 1 < total else 0})")
        for T in (0, 1):
            f = vr(FR + 8 * (n % 3) + 4 * T, 4); a = vr(acc(n // 36, T), 16)
            c = "0" if (n % 36 == 0 and czero) else a
            x, y = (breg(n % 36), f) if swap else (f, breg(n % 36))
            out.append(f"{MF16} {a}, {x}, {y}, {c}")
            if n + 2 < total: out += tr_reads(FR, trb, n + 2, T, r2)
            out += flat(gaps.get(2 * n + T, []))
    return out

def dma_pair(m0expr, soff_pre, soff, va, vb, srd, tag, flags=""):
    return ([m0expr] + soff_pre + ([] if soff_pre else ["s_nop 0"]) +
            [f"buffer_load_dwordx4 v{va}, {sr(srd, 4)}, {soff} offen lds{flags} ;#{tag}"],
            f"buffer_load_dwordx4 v{vb}, {sr(srd, 4)}, {soff} offen offset:1024 lds{flags} ;#{tag}")

def lane_consts_tr(trb, native, tmp, lane):
    t0, t1 = tmp, tmp + 1
    return [f"v_bfe_u32 v{t0}, v{lane}, 2, 2",
            f"v_lshrrev_b32 v{t1}, 5, v{lane}",
            f"v_lshl_add_u32 v{t1}, v{t1}, {2 if native else 3}, v{t0}",
            f"v_lshlrev_b32 v{trb}, 7, v{t1}",
            f"v_lshrrev_b32 v{t0}, 1, v{t0}",
            f"v_lshl_add_u32 v{trb}, v{t0}, 6, v{trb}",
            f"v_bfe_u32 v{t0}, v{lane}, 4, 1",
            f"v_lshl_add_u32 v{trb}, v{t0}, 5, v{trb}",
            f"v_and_b32 v{t0}, 3, v{lane}",
            f"v_lshl_add_u32 v{trb}, v{t0}, 3, v{trb}",
            f"v_xor_b32 v{trb + 1}, 64, v{trb}"]

def lane_consts_wdma(va, vb, tmp, lane, s_rowbase, s_stride, s_tmp):
    return [f"v_lshrrev_b32 v{tmp}, 3, v{lane}",
            f"v_add_u32 v{tmp}, s{s_rowbase}, v{tmp}",
            f"v_mul_lo_u32 v{va}, v{tmp}, s{s_stride}",
            f"v_bfe_u32 v{tmp}, v{lane}, 4, 1",
            f"v_lshlrev_b32 v{tmp}, 2, v{tmp}",
            f"v_and_b32 v{vb}, 7, v{lane}",
            f"v_xor_b32 v{tmp}, v{tmp}, v{vb}",
            f"v_lshl_add_u32 v{va}, v{tmp}, 4, v{va}",
            f"s_lshl_b32 s{s_tmp}, s{s_stride}, 3",
            f"s_sub_u32 s{s_tmp}, s{s_tmp}, 1024",
            f"v_add_u32 v{vb}, s{s_tmp}, v{va}"]

def srd(s, lo, hi, nbytes):
    return [f"s_mov_b32 s{s}, s{lo}", f"s_and_b32 s{s + 1}, s{hi}, 0xffff", f"s_mov_b32 s{s + 2}, {nbytes:#x}", f"s_mov_b32 s{s + 3}, 0x20000"]

def prefetch_code(label, nbytes_expr_n, spair, vaddr, vdst, uid, threads=256):
    out = [f"s_getpc_b64 {sr(spair, 2)}", f"L_pc_{uid}:",
           f"s_add_u32 s{spair}, s{spair}, {label}-L_pc_{uid}", f"s_addc_u32 s{spair + 1}, s{spair + 1}, 0"]
    for i in range(nbytes_expr_n):
        out.append(f"global_load_dwordx4 {vr(vdst, 4)}, v{vaddr}, {sr(spair, 2)} ;#PF")
        if i + 1 < nbytes_expr_n:
            out += [f"s_add_u32 s{spair}, s{spair}, {threads * 16}", f"s_addc_u32 s{spair + 1}, s{spair + 1}, 0"]
    return out

def gelu_pair(a, b, t0, t1, kmul, kadd):
    return [f"v_mul_f32 v{t0}, v{a}, v{a}", f"v_mul_f32 v{t1}, v{b}, v{b}",
            f"v_fma_f32 v{t0}, v{t0}, {kmul}, {kadd}", f"v_fma_f32 v{t1}, v{t1}, {kmul}, {kadd}",
            f"v_mul_f32 v{t0}, v{t0}, v{a}", f"v_mul_f32 v{t1}, v{t1}, v{b}",
            f"v_exp_f32 v{t0}, v{t0}", [f"v_exp_f32 v{t1}, v{t1}",
            f"v_add_f32 v{t0}, 1.0, v{t0}"], f"v_add_f32 v{t1}, 1.0, v{t1}",
            f"v_rcp_f32 v{t0}, v{t0}", [f"v_rcp_f32 v{t1}, v{t1}",
            f"v_mul_f32 v{a}, v{t0}, v{a}"], f"v_mul_f32 v{b}, v{t1}, v{b}"]
```

```python
from engine import *
from layout import *

X, ACC0, ACC1, FR = 0, 144, 176, 208
TRB, WA, WB, NMU, RHO, RS1, VB, VH, RHOB, ADB, KADD = 232, 234, 235, 236, 237, 238, 239, 240, 241, 242, 243
T0 = 244
LANE = 255
sX, sW, sWS = 8, 12, 16
sR, sC, sROT, sWV, sM0, sSTR, sTMP, sSO = 26, 27, 28, 29, 30, 31, 20, 21
sXo, sWo, sC0, sDF = 32, 41, 52, 76
sSEL1, sSEL2, sONES, sOOB, sKT = 50, 51, 22, 23, 24
acc = lambda st, T: (ACC0 if st % 2 == 0 else ACC1) + 16 * T
breg = lambda ks: vr(X + 4 * ks, 4)

def qk_const(w):
    b, u = divmod(w, 9)
    if u == 4: return b * PS + 2048
    odd = u > 4; qi = u - 5 * odd
    return b * PS + 1024 * odd + 512 * (qi >> 1) + 8 * (qi & 1)

def w_block(b):
    st, kb = divmod(b, 9)
    pre = [f"s_add_u32 s{sSO}, s{sWo + kb}, {128 * st}"]
    return dma_pair(f"s_add_u32 m0, s{sM0}, {8192 * (b % 18)}", pre, f"s{sSO}", WA, WB, sW, f"W{b // 3}")

def center(ks, scaled):
    t = ACC1 + 8 * (ks % 2); out = []
    for i in range(4):
        r = X + 4 * ks + i
        out += [f"v_dot2_f32_bf16 v{t + 2*i}, v{r}, s{sSEL1}, v{NMU}", f"v_dot2_f32_bf16 v{t + 2*i + 1}, v{r}, s{sSEL2}, v{NMU}"]
    if scaled:
        out += ["s_nop 0"] * 0 + [f"v_mul_f32 v{t + i}, v{RHO}, v{t + i}" for i in range(8)]
    out += [f"v_cvt_pk_bf16_f32 v{X + 4*ks + i}, v{t + 2*i}, v{t + 2*i + 1}" for i in range(4)]
    return out

def fm_store(src, jj, s_off, tmp, copy):
    out = [f"v_mov_b32 v{tmp + i}, v{src + i}" for i in range(4)] if copy else []
    out += [["s_nop 1", f"v_permlane32_swap_b32 v{tmp}, v{tmp + 2}", f"v_permlane32_swap_b32 v{tmp + 1}, v{tmp + 3}",
             f"buffer_store_dwordx4 {vr(tmp, 4)}, v{T0 + 10}, {sr(sWS, 4)}, s{s_off} offen offset:{1024 * jj}", "s_nop 1"]]
    return out

def common(name):
    A = Asm()
    A(f"""s_cmp_ge_u32 s2, 256
    s_cbranch_scc1 L1_end
    s_load_dwordx4 s[4:7], s[0:1], 0
    s_load_dwordx2 s[20:21], s[0:1], 32
    s_load_dwordx2 s[22:23], s[0:1], 80
    v_lshlrev_b32 v{T0}, 4, v0""")
    A.many(prefetch_code("L1_pf0", 2, 100, T0, T0 + 4, "k1a"))
    A(f"""L1_pf0:
    s_and_b32 s24, s2, 7
    s_lshr_b32 s25, s2, 3
    s_cmp_ge_u32 s25, 24
    s_cbranch_scc1 L1_helper
    s_lshr_b32 s{sR}, s24, 1
    s_lshl_b32 s{sR}, s{sR}, 2
    s_and_b32 s3, s25, 3
    s_add_u32 s{sR}, s{sR}, s3
    s_and_b32 s{sC}, s24, 1
    s_mul_i32 s{sC}, s{sC}, 6
    s_lshr_b32 s3, s25, 2
    s_add_u32 s{sC}, s{sC}, s3
    s_lshl_b32 s3, s{sR}, 1
    s_add_u32 s3, s3, s{sC}
    s_mul_i32 s{sROT}, s3, 57
    s_lshr_b32 s{sROT}, s{sROT}, 9
    s_mul_i32 s{sROT}, s{sROT}, 9
    s_sub_u32 s{sROT}, s3, s{sROT}
    v_lshrrev_b32 v1, 6, v0
    v_and_b32 v{LANE}, 63, v0
    v_readfirstlane_b32 s{sWV}, v1
    s_getpc_b64 s[100:101]
L1_pcv:
    s_mov_b32 s3, L1_qk-L1_pcv
    s_cmp_ge_u32 s{sC}, 6
    s_cselect_b32 s3, L1_v-L1_pcv, s3
    s_cmp_ge_u32 s{sC}, 9
    s_cselect_b32 s3, L1_w1-L1_pcv, s3
    s_add_u32 s100, s100, s3
    s_addc_u32 s101, s101, 0""")
    XA, XB, XR = ACC0, ACC0 + 1, ACC0 + 2
    A(f"""v_lshrrev_b32 v1, 3, v{LANE}
    v_mul_u32_u24 v{XA}, 1152, v1
    v_lshrrev_b32 v1, 4, v{LANE}
    v_and_b32 v2, 7, v{LANE}
    v_xor_b32 v1, v1, v2
    v_xor_b32 v2, 4, v1
    v_lshl_add_u32 v{XB}, v2, 4, v{XA}
    v_add_u32 v{XB}, {8 * 1152 - 1024}, v{XB}
    v_lshl_add_u32 v{XA}, v1, 4, v{XA}
    s_lshl_b32 s{sKT}, s{sR}, 2
    s_add_u32 s{sKT}, s{sKT}, s{sWV}
    s_mul_i32 s25, s{sKT}, {32 * 1152}
    s_lshl_b32 s{sM0}, s{sWV}, 11""")
    for p in range(9):
        A(f"""s_add_u32 s3, s{sROT}, {p}
        s_cmp_ge_u32 s3, 9
        s_cselect_b32 s{sWo + p}, 9, 0
        s_sub_u32 s{sWo + p}, s3, s{sWo + p}
        s_lshl_b32 s3, s{sWo + p}, 7
        s_add_u32 s{sXo + p}, s3, s25""")
    A("s_waitcnt lgkmcnt(0)")
    A.many(srd(sX, 4, 5, S * D * 2))
    A.many(srd(sWS, 22, 23, WS_USED))
    for p in range(9):
        for hi in range(2):
            pre = [f"s_add_u32 s3, s{sXo + p}, {16 * 1152 * hi}"]
            g, b = dma_pair(f"s_add_u32 m0, s{sM0}, {8192 * (2 * p + hi)}", pre, "s3", XA, XB, sX, f"X{p}")
            A.many(g + [b])
    for i in range(4):
        A(f"global_load_dwordx4 {vr(T0 + 4, 4)}, v{T0}, s[100:101] ;#PF")
        if i < 3: A("s_add_u32 s100, s100, 4096\ns_addc_u32 s101, s101, 0")
    A(f"""s_mov_b32 s{sW + 2}, {D * 3 * D * 2}
    s_movk_i32 s{sSTR}, 3456
    s_cmp_ge_u32 s{sC}, 9
    s_cselect_b32 s{sW}, s20, s6
    s_cselect_b32 s{sW + 1}, s21, s7
    s_cselect_b32 s{sW + 2}, {D * D * 2}, s{sW + 2}
    s_cselect_b32 s{sSTR}, 1152, s{sSTR}
    s_cselect_b32 s3, 9, 0
    s_cselect_b32 s{sOOB}, 0x40000000, 0
    s_and_b32 s{sW + 1}, s{sW + 1}, 0xffff
    s_mov_b32 s{sW + 3}, 0x20000
    s_sub_u32 s3, s{sC}, s3
    s_mul_i32 s3, s3, 384
    s_lshl_b32 s4, s{sSTR}, 6
    s_mul_i32 s5, s{sKT}, 36864
    s_lshl_b32 s6, s{sWo}, 12
    s_add_u32 s5, s5, s6
    s_add_u32 s5, s5, s{sOOB}
    s_add_u32 s6, s5, {OFF_XF}
    s_add_u32 s7, s5, {OFF_XN}""")
    for p in range(9):
        A(f"s_mul_i32 s{sWo + p}, s{sWo + p}, s4\ns_add_u32 s{sWo + p}, s{sWo + p}, s3")
    A(f"s_lshl_b32 s25, s{sWV}, 4")
    A.many(lane_consts_wdma(WA, WB, 1, LANE, 25, sSTR, 3))
    A.many(lane_consts_tr(TRB, False, 1, LANE))
    A(f"""v_and_b32 v1, 31, v{LANE}
    v_lshrrev_b32 v{VH}, 5, v{LANE}
    v_lshrrev_b32 v2, 4, v1
    v_lshlrev_b32 v2, 13, v2
    v_add_u32 v2, s{sM0}, v2
    v_and_b32 v3, 15, v1
    v_lshl_add_u32 v2, v3, 7, v2
    v_bfe_u32 v3, v1, 1, 3
    v_xor_b32 v3, v3, v{VH}""")
    for jj in range(4):
        A(f"v_xor_b32 v4, {2 * jj}, v3\nv_lshl_add_u32 v{XR + jj}, v4, 4, v2")
    SUM = ACC0 + 8
    A(f"""v_lshlrev_b32 v{T0 + 10}, 4, v{LANE}
    v_lshlrev_b32 v{VB}, 4, v1
    s_mov_b32 s{sONES}, 0x3f803f80
    s_mov_b32 s{sSEL1}, 0x00003f80
    s_mov_b32 s{sSEL2}, 0x3f800000""")
    for i in range(4): A(f"v_mov_b32 v{SUM + i}, 0")
    def stats(p):
        out = []
        for i in range(16):
            r = X + 16 * p + i
            out += [f"v_dot2_f32_bf16 v{SUM + (i & 1)}, v{r}, s{sONES}, v{SUM + (i & 1)}",
                    f"v_dot2_f32_bf16 v{SUM + 2 + (i & 1)}, v{r}, v{r}, v{SUM + 2 + (i & 1)}"]
        return out
    for p in range(9):
        if p in (4, 8):
            for jj in range(4): A(f"v_add_u32 v{XR + jj}, 0x10000, v{XR + jj}")
        A(f"@waitvm X{p}")
        for jj in range(4): A(f"ds_read_b128 {vr(X + 16 * p + 4 * jj, 4)}, v{XR + jj} offset:{16384 * (p % 4)}")
        if p: A.many(stats(p - 1))
        if p == 1:
            for jj in range(4): A.many(flat(fm_store(X + 4 * jj, jj, 6, ACC1 + 4 * jj, True)))
        A("s_waitcnt lgkmcnt(0)")
        for b in (2 * p, 2 * p + 1):
            g, x = w_block(b); A.many(g + [x])
    A.many(stats(8))
    m, q = SUM, SUM + 2
    A(f"""s_nop 2
    v_add_f32 v{m}, v{m}, v{m + 1}
    v_add_f32 v{q}, v{q}, v{q + 1}
    v_mov_b32 v{m + 1}, v{m}
    v_mov_b32 v{q + 1}, v{q}
    s_nop 1
    v_permlane32_swap_b32 v{m}, v{m + 1}
    v_permlane32_swap_b32 v{q}, v{q + 1}
    v_add_f32 v{m}, v{m}, v{m + 1}
    v_add_f32 v{q}, v{q}, v{q + 1}
    v_mul_f32 v{NMU}, {f2u(-1.0 / D):#x}, v{m}
    v_mul_f32 v{q}, {f2u(1.0 / D):#x}, v{q}
    v_fma_f32 v{q}, -v{NMU}, v{NMU}, v{q}
    v_max_f32 v{q}, 0, v{q}
    v_add_f32 v{m}, {f2u(EPS):#x}, v{q}
    v_rsq_f32 v{RS1}, v{m}
    v_mul_f32 v{m}, {f2u(EPS):#x}, v{m}
    v_add_f32 v{m}, v{m}, v{q}
    v_rsq_f32 v{RHOB}, v{m}
    s_cmp_ge_u32 s{sC}, 9
    s_cbranch_scc1 L1_w1
    s_cmp_ge_u32 s{sC}, 6
    s_cbranch_scc1 L1_v""")
    return A

def main(A, swap, scaled, epi, extra1):
    A("@waitvm W0\ns_barrier")
    A.many(first_reads(FR, TRB, 512))
    A.many(center(0, scaled) + center(1, scaled))
    gaps = {}
    for ks in range(2, 36):
        spread(gaps, center(ks, scaled), 2 * (ks - 2), 2 * (ks - 1))
    for t in range(3):
        n = 12 * (t + 1) + 10
        for i in range(3):
            g, x = w_block(18 + 3 * t + i)
            gaps.setdefault(2 * n + 1 + 8 * i, []).insert(0, g); gaps.setdefault(2 * n + 2 + 8 * i, []).insert(0, x)
    spread(gaps, epi(0), 72 + 4, 72 + 50); spread(gaps, extra1, 72 + 50, 144)
    spread(gaps, epi(1), 144 + 4, 216)
    A.many(steps(0, 108, 108, FR, TRB, 512, breg, acc, swap, gaps))
    A("s_nop 11")
    A.many(flat(epi(2)))
    A("s_endpgm")

def qk(C):
    A = C.fork(); A("L1_qk:")
    A(f"""s_movk_i32 s4, {OFF_Q}
    s_cmp_ge_u32 s{sC}, 3
    s_cselect_b32 s3, 1.0, {f2u(QSCALE):#x}
    s_cselect_b32 s4, {OFF_KV}, s4
    s_cselect_b32 s5, 3, 0
    v_mul_f32 v{RHO}, s3, v{RS1}
    s_mul_i32 s3, s{sKT}, {REC}
    s_add_u32 s3, s3, s4
    v_add_u32 v{VB}, s3, v{VB}
    s_sub_u32 s5, s{sC}, s5
    s_cmp_eq_u32 s5, 1
    s_cbranch_scc1 L1_tab1
    s_cmp_eq_u32 s5, 2
    s_cbranch_scc1 L1_tab2""")
    for cp in range(3):
        A.tracing = cp == 0
        if cp: A(f"L1_tab{cp}:")
        for q in range(24):
            c0, c1 = qk_const(48 * cp + 2 * q), qk_const(48 * cp + 2 * q + 1)
            A(f"s_mov_b32 s{sC0 + q}, {c0}\ns_mov_b32 s{sDF + q}, {(c1 - c0) & 0xffffffff:#x}")
        if cp < 2: A("s_branch L1_tabx")
    A.tracing = True
    A("L1_tabx:")
    def epi(st):
        out = []
        for T in range(2):
            for g in range(4):
                r = acc(st, T) + 4 * g; q = 8 * st + 4 * T + g; t = T0 + (g & 1)
                out += [f"v_mul_f32 v{r + i}, v{RHO}, v{r + i}" for i in range(4)]
                out += [f"v_cvt_pk_bf16_f32 v{r}, v{r}, v{r + 1}", f"v_cvt_pk_bf16_f32 v{r + 1}, v{r + 2}, v{r + 3}",
                        f"v_mad_i32_i24 v{t}, v{VH}, s{sDF + q}, v{VB}",
                        f"buffer_store_dwordx2 {vr(r, 2)}, v{t}, {sr(sWS, 4)}, s{sC0 + q} offen"]
        return out
    xn = []
    for jj in range(4):
        o = T0 + 4
        for i in range(4):
            r = X + 4 * jj + i
            xn += [f"v_lshlrev_b32 v{T0 + 2}, 16, v{r}", f"v_and_b32 v{T0 + 3}, 0xffff0000, v{r}",
                   f"v_mul_f32 v{T0 + 2}, v{RS1}, v{T0 + 2}", f"v_mul_f32 v{T0 + 3}, v{RS1}, v{T0 + 3}",
                   f"v_cvt_pk_bf16_f32 v{o + i}, v{T0 + 2}, v{T0 + 3}"]
        xn += fm_store(o, jj, 7, o, False)
    main(A, False, False, epi, xn)
    return A

def vv(C):
    A = C.fork(); A("L1_v:")
    A(f"""v_mov_b32 v{RHO}, v{RS1}
    s_mul_i32 s3, s{sKT}, {REC}
    s_add_u32 s3, s3, {OFF_KV + V_OFF}
    v_mul_u32_u24 v{VB}, {V_HALF}, v{VH}
    v_add_u32 v{VB}, s3, v{VB}
    s_sub_u32 s4, s{sC}, 6
    s_mul_i32 s4, s4, 192
    v_and_b32 v{ADB}, 31, v{LANE}
    v_add_u32 v{ADB}, s4, v{ADB}
    s_mov_b32 s4, {PS}
    s_mov_b32 s5, {V_HEAD}
    s_cmp_eq_u32 s{sC}, 6
    s_cselect_b32 s25, s3, 0x40000000""")
    def epi(st):
        out = []
        for T in range(2):
            r = acc(st, T); a, d = T0, T0 + 1; ad = T0 + 2 + T
            out += [f"v_add_u32 v{d}, {64 * st + 32 * T}, v{ADB}", f"v_mul_u32_u24 v{a}, 3641, v{d}", f"v_lshrrev_b32 v{a}, 16, v{a}",
                    f"v_mad_i32_i24 v{d}, v{a}, -18 + 0, v{d}".replace("-18 + 0", "s52"),
                    f"v_lshl_add_u32 v{ad}, v{d}, 4, v{VB}", f"v_and_b32 v{d}, 1, v{a}", f"v_mad_u32_u24 v{ad}, v{d}, s5, v{ad}",
                    f"v_lshrrev_b32 v{a}, 1, v{a}", f"v_mad_u32_u24 v{ad}, v{a}, s4, v{ad}"]
            for s in range(2):
                out += [f"v_cvt_pk_bf16_f32 v{r + 8*s + i}, v{r + 8*s + 2*i}, v{r + 8*s + 2*i + 1}" for i in range(4)]
                out += [f"buffer_store_dwordx4 {vr(r + 8*s, 4)}, v{ad}, {sr(sWS, 4)}, 0 offen offset:{V_STEP * s}"]
        return out
    A("s_mov_b32 s52, -18")
    xn = []
    for jj in range(4): xn += fm_store(X + 4 * jj, jj, 7, T0 + 4, True)
    o = T0 + 4
    xn += [f"v_mov_b32 v{o + i}, 0x3f803f80" for i in range(4)]
    xn += [f"v_lshrrev_b32 v{T0}, 3, v{LANE}", f"v_mul_u32_u24 v{T0}, s4, v{T0}", f"v_bfe_u32 v{T0 + 1}, v{LANE}, 2, 1",
           f"v_mad_u32_u24 v{T0}, v{T0 + 1}, s5, v{T0}", f"v_and_b32 v{T0 + 1}, 3, v{LANE}",
           f"v_mul_u32_u24 v{T0 + 1}, {V_HALF}, v{T0 + 1}", f"v_add_u32 v{T0}, v{T0}, v{T0 + 1}",
           f"buffer_store_dwordx4 {vr(o, 4)}, v{T0}, {sr(sWS, 4)}, s25 offen offset:{16 * 18}",
           f"v_add_u32 v{T0}, {8 * PS}, v{T0}",
           f"buffer_store_dwordx4 {vr(o, 4)}, v{T0}, {sr(sWS, 4)}, s25 offen offset:{16 * 18}"]
    main(A, True, True, epi, xn)
    return A

def w1(C):
    A = C.fork(); A("L1_w1:")
    RA, RB_, AA, AB = RS1, RHOB, VB, ADB
    A(f"""s_sub_u32 s3, s{sC}, 9
    s_mul_i32 s4, s3, 12288
    s_add_u32 s52, s4, {OFF_HS}
    s_add_u32 s53, s52, 4096
    s_add_u32 s54, s52, 8192
    s_mul_i32 s4, s3, 3
    s_sub_u32 s55, 9, s4
    s_cmp_eq_u32 s3, 1
    s_cselect_b32 s4, -1, 1
    s_cselect_b32 s5, 2, -1
    s_cmp_eq_u32 s3, 2
    s_cselect_b32 s4, 2, s4
    s_cselect_b32 s5, -2, s5
    s_lshl_b32 s3, s{sKT}, 5
    s_add_u32 s4, s4, s3
    s_add_u32 s5, s5, s3
    s_mov_b32 s56, {f2u(-GK2):#x}
    s_mov_b32 s57, 36864
    s_movk_i32 s58, 0x800
    v_mov_b32 v{KADD}, {f2u(-GK1):#x}
    v_mov_b32 v{T0 + 3}, v{RHOB}
    v_and_b32 v{T0}, 31, v{LANE}""")
    for sh, rho, ad in ((4, RA, AA), (5, RB_, AB)):
        A(f"""v_add_u32 v{T0 + 1}, s{sh}, v{T0}
        v_cmp_gt_u32 vcc, s58, v{T0 + 1}
        v_and_b32 v{T0 + 1}, 0x7ff, v{T0 + 1}
        v_lshrrev_b32 v{T0 + 2}, 5, v{T0 + 1}
        v_cndmask_b32 v{rho}, 0, v{T0 + 3}, vcc
        v_mul_u32_u24 v{ad}, s57, v{T0 + 2}
        v_and_b32 v{T0 + 1}, 31, v{T0 + 1}
        v_lshl_add_u32 v{ad}, v{T0 + 1}, 4, v{ad}
        v_lshl_add_u32 v{ad}, v{VH}, 9, v{ad}""")
    def epi(st):
        out = []
        for T in range(2):
            for s in range(2):
                r = acc(st, T) + 8 * s; jl = 4 * st + 2 * T + s; ad = T0 + 2 + s
                out += [[f"s_cmp_lt_u32 {jl}, s55", "s_cselect_b64 s[60:61], -1, 0", f"v_cndmask_b32 v{RHO}, v{RB_}, v{RA}, s[60:61]",
                         f"v_cndmask_b32 v{ad}, v{AB}, v{AA}, s[60:61]"]]
                for i in range(4):
                    a, b = r + 2 * i, r + 2 * i + 1
                    out += [f"v_mul_f32 v{a}, v{RHO}, v{a}", f"v_mul_f32 v{b}, v{RHO}, v{b}"]
                    out += gelu_pair(a, b, T0, T0 + 1, "s56", f"v{KADD}")
                    out += [f"v_cvt_pk_bf16_f32 v{r + i}, v{a}, v{b}"]
                out += [f"buffer_store_dwordx4 {vr(r, 4)}, v{ad}, {sr(sWS, 4)}, s{52 + st} offen offset:{1024 * (2 * T + s)}"]
        return out
    main(A, False, False, epi, [])
    return A

def helper(code_from, code_pieces, entry):
    A = Asm(); A.trace = list(entry); A("L1_helper:")
    A(f"""s_load_dwordx2 s[8:9], s[0:1], 16
    s_load_dwordx4 s[12:15], s[0:1], 40
    s_load_dwordx2 s[16:17], s[0:1], 56
    s_sub_u32 s25, s25, 24
    s_getpc_b64 s[36:37]
L1_pch:
    s_add_u32 s36, s36, {code_from}-L1_pch
    s_addc_u32 s37, s37, 0
    s_mul_i32 s3, s25, {4096 * code_pieces}
    v_add_u32 v1, s3, v{T0}""")
    for i in range(code_pieces):
        A(f"global_load_dwordx4 v[4:7], v1, s[36:37]\nv_add_u32 v1, 4096, v1")
    A("s_waitcnt lgkmcnt(0)")
    A.many(srd(40, 14, 15, D * F * 2)); A.many(srd(44, 16, 17, D * F * 2))
    A.many(srd(48, 8, 9, D * D * 2)); A.many(srd(52, 12, 13, D * D * 2))
    A(f"""v_mul_u32_u24 v1, 911, v0
    v_lshrrev_b32 v1, 16, v1
    v_mul_u32_u24 v2, 72, v1
    v_sub_u32 v2, v0, v2
    v_mul_u32_u24 v1, 9216, v1
    v_lshl_add_u32 v1, v2, 4, v1
    v_mov_b32 v2, 0x40000000
    v_cmp_gt_u32 vcc, 216, v0
    s_mul_i32 s3, s25, {72 * 9216}
    s_mul_i32 s4, s24, 1152
    v_cndmask_b32 v1, v2, v1, vcc
    s_add_u32 s3, s3, s4""")
    for i in range(24):
        A(f"buffer_load_dwordx4 v[4:7], v1, s[40:43], s3 offen\ns_add_u32 s3, s3, {3 * 9216}")
    A(f"""s_lshl_b32 s3, s24, 3
    s_add_u32 s3, s3, s25
    s_mul_i32 s4, s3, {72 * 1152}
    s_mul_i32 s5, s3, {D * D * 2 // 64}""")
    for i in range(21):
        A(f"buffer_load_dwordx4 v[4:7], v{T0}, s[44:47], s4 offen\ns_add_u32 s4, s4, 4096")
    for i in range(3):
        A(f"buffer_load_dwordx4 v[4:7], v{T0}, s[48:51], s5 offen\nbuffer_load_dwordx4 v[4:7], v{T0}, s[52:55], s5 offen\ns_add_u32 s5, s5, 4096")
    A("L1_end:\ns_endpgm")
    return A

def build(code_from, code_pieces):
    C = common("k1")
    parts = [qk(C), vv(C), w1(C)]
    Hh = helper(code_from, code_pieces, C.trace[:C.trace.index('s_cbranch_scc1 L1_helper')])
    errs = []
    for n, p in zip(("qk", "v", "w1", "h"), parts + [Hh]): errs += check(p.trace, "k1." + n)
    return C.text() + "".join(p.text() for p in parts) + Hh.text(), errs
```

```python
S, D, H, DH, F = 2048, 576, 32, 18, 4608
FMSZ = 64 * 36 * 1024
REC = 4992
PS = 64 * REC
V_OFF = 2560; V_HEAD = 1216; V_STEP = 608; V_HALF = 304
OFF_Q = 4096
OFF_KV = OFF_Q + 16 * PS
OFF_HS = OFF_KV + 16 * PS
OFF_XN = OFF_HS + FMSZ
OFF_XF = OFF_XN + FMSZ
OFF_X1 = OFF_XF + FMSZ
OFF_OF = OFF_X1 + FMSZ
OFF_ST = OFF_OF + FMSZ
OFF_CS = OFF_ST + 9 * 2048 * 8
OFF_PT = OFF_CS + 4608 * 8
WS_USED = OFF_PT + 8 * FMSZ
EPS = 1e-5
import math, struct
def f2u(x): return struct.unpack("<I", struct.pack("<f", x))[0]
LOG2E = math.log2(math.e)
QSCALE = DH ** -0.5 * LOG2E
GK1 = 2 * math.sqrt(2 / math.pi) * LOG2E
GK2 = GK1 * 0.044715
```

```python
import sys, importlib
sys.path.insert(0, "work")
from layout import *
NAME = "parallel_sum__softmax_full_mha__mixer_s_mlp__prompt"
HEADER = open(f"cdna_kernels/{NAME}.s.ref").read().split("; Override launch")[0]

def kernel(name, body):
    return f".globl {name}\n.p2align 8\n.type {name},@function\n{name}:\n{body}"
def desc(name, vgpr, accum):
    return f""".amdhsa_kernel {name}
  .amdhsa_next_free_vgpr {vgpr}
  .amdhsa_next_free_sgpr 102
  .amdhsa_accum_offset {accum}
  .amdhsa_group_segment_fixed_size 0
  .amdhsa_kernarg_size 88
  .amdhsa_user_sgpr_count 2
  .amdhsa_user_sgpr_kernarg_segment_ptr 1
  .amdhsa_system_sgpr_workgroup_id_x 1
.end_amdhsa_kernel
"""
def build(which=("k1", "k2", "k3", "k4")):
    errs = []; ks = []
    import k1
    t, e = k1.build("L_after_k1", 2); errs += e
    ks.append(("k1_kernel", t + "L_after_k1:\n", 256, 256, 147456, 256, 256))
    for nm in ("k2", "k3", "k4"):
        if nm in which:
            m = importlib.import_module(nm); t, e, grid, lds, vg, ac = m.build(); errs += e
            ks.append((nm + "_kernel", t, grid, 256, lds, vg, ac))
    s = HEADER
    for n, t, g, b, lds, vg, ac in ks: s += f"; @launch kernel={n} grid=({g},1,1) block=({b},1,1) lds={lds}\n"
    s += '.amdgcn_target "amdgcn-amd-amdhsa--gfx950"\n.text\n'
    for n, t, *_ in ks: s += kernel(n, t)
    s += ".p2align 8\nL_text_end:\n.fill 18432, 4, 0xbf810000\n"
    s += '.section .rodata,"a"\n'
    for n, t, g, b, lds, vg, ac in ks: s += ".p2align 6\n" + desc(n, vg, ac)
    return s, errs
if __name__ == "__main__":
    which = sys.argv[2].split(",") if len(sys.argv) > 2 else ("k1", "k2", "k3", "k4")
    s, errs = build(which)
    for e in errs[:30]: print(e)
    print(len(errs), "hazard findings;", len(s), "bytes of source")
    open(sys.argv[1] if len(sys.argv) > 1 else f"cdna_kernels/{NAME}.s", "w").write(s)
```

```python
from asmlib import *

MF16 = "v_mfma_f32_32x32x16_bf16"
MF8 = "v_mfma_f32_32x32x8_bf16"
STAGE = 24576
NSTAGE = 6

def flat(x):
    out = []
    for e in x:
        if isinstance(e, (list, tuple)): out += flat(e)
        else: out.append(e)
    return out

def spread(gaps, items, g0, g1):
    free = [g for g in range(g0, g1) if g % 24 != 19]
    n = len(items); k = len(free)
    for i, it in enumerate(items):
        gaps.setdefault(free[i * k // n], []).append(it)

def tr_reads(FR, trb, n, T, r2):
    b = n // 4; off = 8192 * (b % 6) + 2048 * (n % 4); f = FR + 8 * (n % 3) + 4 * T
    trb += 2 * ((n // 24) % 3)
    return [f"ds_read_b64_tr_b16 {vr(f, 2)}, v{trb + T} offset:{off}",
            f"ds_read_b64_tr_b16 {vr(f + 2, 2)}, v{trb + T} offset:{off + r2}"]

def first_reads(FR, trb, r2):
    return flat([tr_reads(FR, trb, n, T, r2) for n in (0, 1) for T in (0, 1)])

def steps(n0, n1, total, FR, trb, r2, breg, acc, swap, gaps, pre=None, wtag=lambda st: f"W{st}", czero=True):
    out = []
    for n in range(n0, n1):
        if n % 12 == 10 and n + 2 < total:
            st = n // 12 + 1
            out += [f"@waitvm {wtag(st)}", "s_barrier"]
        out += flat((pre or {}).get(n, []))
        out.append(f"s_waitcnt lgkmcnt({4 if n + 1 < total else 0})")
        for T in (0, 1):
            f = vr(FR + 8 * (n % 3) + 4 * T, 4); a = vr(acc(n // 36, T), 16)
            c = "0" if (n % 36 == 0 and czero) else a
            x, y = (breg(n % 36), f) if swap else (f, breg(n % 36))
            out.append(f"{MF16} {a}, {x}, {y}, {c}")
            if n + 2 < total: out += tr_reads(FR, trb, n + 2, T, r2)
            out += flat(gaps.get(2 * n + T, []))
    return out

def dma_pair(m0expr, soff_pre, soff, va, vb, srd, tag, flags=""):
    return ([m0expr] + soff_pre + ([] if soff_pre else ["s_nop 0"]) +
            [f"buffer_load_dwordx4 v{va}, {sr(srd, 4)}, {soff} offen lds{flags} ;#{tag}"],
            f"buffer_load_dwordx4 v{vb}, {sr(srd, 4)}, {soff} offen offset:1024 lds{flags} ;#{tag}")

def lane_consts_tr(trb, native, tmp, lane, sets=3):
    t0, t1 = tmp, tmp + 1
    return [f"v_bfe_u32 v{t0}, v{lane}, 2, 2",
            f"v_lshrrev_b32 v{t1}, 5, v{lane}",
            f"v_lshl_add_u32 v{t1}, v{t1}, {2 if native else 3}, v{t0}",
            f"v_lshlrev_b32 v{trb}, 7, v{t1}",
            f"v_lshrrev_b32 v{t0}, 1, v{t0}",
            f"v_lshl_add_u32 v{trb}, v{t0}, 6, v{trb}",
            f"v_bfe_u32 v{t0}, v{lane}, 4, 1",
            f"v_lshl_add_u32 v{trb}, v{t0}, 5, v{trb}",
            f"v_and_b32 v{t0}, 3, v{lane}",
            f"v_lshl_add_u32 v{trb}, v{t0}, 3, v{trb}",
            f"v_xor_b32 v{trb + 1}, 64, v{trb}"] + \
           [f"v_add_u32 v{trb + 2 * u + T}, {2 * STAGE * u}, v{trb + T}" for u in range(1, sets) for T in range(2)]

def lane_consts_wdma(va, vb, tmp, lane, s_rowbase, s_stride, s_tmp):
    return [f"v_lshrrev_b32 v{tmp}, 3, v{lane}",
            f"v_add_u32 v{tmp}, s{s_rowbase}, v{tmp}",
            f"v_mul_lo_u32 v{va}, v{tmp}, s{s_stride}",
            f"v_bfe_u32 v{tmp}, v{lane}, 4, 1",
            f"v_lshlrev_b32 v{tmp}, 2, v{tmp}",
            f"v_and_b32 v{vb}, 7, v{lane}",
            f"v_xor_b32 v{tmp}, v{tmp}, v{vb}",
            f"v_lshl_add_u32 v{va}, v{tmp}, 4, v{va}",
            f"s_lshl_b32 s{s_tmp}, s{s_stride}, 3",
            f"s_sub_u32 s{s_tmp}, s{s_tmp}, 1024",
            f"v_add_u32 v{vb}, s{s_tmp}, v{va}"]

def srd(s, lo, hi, nbytes):
    return [f"s_mov_b32 s{s}, s{lo}", f"s_and_b32 s{s + 1}, s{hi}, 0xffff", f"s_mov_b32 s{s + 2}, {nbytes:#x}", f"s_mov_b32 s{s + 3}, 0x20000"]

def prefetch_code(label, nbytes_expr_n, spair, vaddr, vdst, uid, threads=256):
    out = [f"s_getpc_b64 {sr(spair, 2)}", f"L_pc_{uid}:",
           f"s_add_u32 s{spair}, s{spair}, {label}-L_pc_{uid}", f"s_addc_u32 s{spair + 1}, s{spair + 1}, 0"]
    for i in range(nbytes_expr_n):
        out.append(f"global_load_dwordx4 {vr(vdst, 4)}, v{vaddr}, {sr(spair, 2)} ;#PF")
        if i + 1 < nbytes_expr_n:
            out += [f"s_add_u32 s{spair}, s{spair}, {threads * 16}", f"s_addc_u32 s{spair + 1}, s{spair + 1}, 0"]
    return out

def gelu_pair(a, b, t0, t1, kmul, kadd):
    return [f"v_mul_f32 v{t0}, v{a}, v{a}", f"v_mul_f32 v{t1}, v{b}, v{b}",
            f"v_fma_f32 v{t0}, v{t0}, {kmul}, {kadd}", f"v_fma_f32 v{t1}, v{t1}, {kmul}, {kadd}",
            f"v_mul_f32 v{t0}, v{t0}, v{a}", f"v_mul_f32 v{t1}, v{t1}, v{b}",
            f"v_exp_f32 v{t0}, v{t0}", [f"v_exp_f32 v{t1}, v{t1}",
            f"v_add_f32 v{t0}, 1.0, v{t0}"], f"v_add_f32 v{t1}, 1.0, v{t1}",
            f"v_rcp_f32 v{t0}, v{t0}", [f"v_rcp_f32 v{t1}, v{t1}",
            f"v_mul_f32 v{a}, v{t0}, v{a}"], f"v_mul_f32 v{b}, v{t1}, v{b}"]

def pace(gaps, blocks, first, earliest, minsp, start):
    pos = start - minsp
    for b, e in earliest:
        pos = max(e, pos + minsp)
        while pos % 24 in (18, 19): pos += 1
        need = 2 * (12 * (b // 3 - 1) + 10)
        assert pos + 1 < need, (b, pos, need)
        g, x = blocks(b)
        gaps.setdefault(pos, []).insert(0, g); gaps.setdefault(pos + 1, []).insert(0, x)

def refill(b):
    return 2 * (12 * (b // 3 - 5) + 10) + 1 + 8 * (b % 3)
```

```python
from engine import *
from layout import *
import os
HELP = int(os.environ.get("HELP", 1))
START = [0, 1, 3, 4, 6, 7, 2, 5, 8, 0, 3, 6]

X, ACC0, ACC1, FR = 0, 144, 176, 208
TRB, WA, WB, NB, RHO, VB, VH, ADB, MA, MB, KADD = 232, 238, 239, 240, 241, 242, 243, 244, 245, 246, 247
T0, LA, LANE = 248, 254, 255
sX, sW, sWS = 8, 12, 16
sR, sC, sROT, sWV, sM0, sSTR, sTMP, sSO = 26, 27, 28, 29, 30, 31, 20, 21
sXo, sWo, sC0, sDF = 32, 41, 52, 76
sSEL1, sSEL2, sONES, sOOB, sKT = 50, 51, 22, 23, 24
acc = lambda st, T: (ACC0 if st % 2 == 0 else ACC1) + 16 * T
breg = lambda ks: vr(X + 4 * ks, 4)

def qk_const(w):
    b, u = divmod(w, 9)
    if u == 4: return b * PS + 2048
    odd = u > 4; qi = u - 5 * odd
    return b * PS + 1024 * odd + 512 * (qi >> 1) + 8 * (qi & 1)

def w_block(b):
    st, kb = divmod(b, 9)
    pre = [f"s_add_u32 s{sSO}, s{sWo + kb}, {128 * st}"]
    return dma_pair(f"s_add_u32 m0, s{sM0}, {8192 * (b % 18)}", pre, f"s{sSO}", WA, WB, sW, f"W{b // 3}")

def center(ks):
    t = ACC1 + 8 * (ks % 2); out = []
    for i in range(4):
        r = X + 4 * ks + i
        out += [f"v_lshlrev_b32 v{t + 2*i}, 16, v{r}", f"v_and_b32 v{t + 2*i + 1}, 0xffff0000, v{r}",
                f"v_fma_f32 v{t + 2*i}, v{t + 2*i}, v{RHO}, v{NB}", f"v_fma_f32 v{t + 2*i + 1}, v{t + 2*i + 1}, v{RHO}, v{NB}",
                f"v_cvt_pk_bf16_f32 v{r}, v{t + 2*i}, v{t + 2*i + 1}"]
    return out

def fm_store(src, jj, s_off, tmp):
    out = [f"v_mov_b32 v{tmp + i}, v{src + i}" for i in range(4)] if src != tmp else []
    out += [["s_nop 1", f"v_permlane32_swap_b32 v{tmp}, v{tmp + 2}", f"v_permlane32_swap_b32 v{tmp + 1}, v{tmp + 3}",
             f"buffer_store_dwordx4 {vr(tmp, 4)}, v{LA}, {sr(sWS, 4)}, s{s_off} offen offset:{1024 * jj} sc1", "s_nop 1"]]
    return out

def common(name):
    A = Asm()
    A(f"""s_cmp_ge_u32 s2, 256
    s_cbranch_scc1 L1_end
    s_load_dwordx4 s[4:7], s[0:1], 0
    s_load_dwordx2 s[20:21], s[0:1], 32
    s_load_dwordx2 s[22:23], s[0:1], 80
    v_lshlrev_b32 v{KADD}, 4, v0""")
    A.many(prefetch_code("L1_pf0", 2, 100, KADD, T0, "k1a"))
    A(f"""L1_pf0:
    s_and_b32 s24, s2, 7
    s_lshr_b32 s25, s2, 3
    s_cmp_ge_u32 s25, 24
    s_cbranch_scc1 L1_helper
    s_lshr_b32 s{sR}, s24, 1
    s_lshl_b32 s{sR}, s{sR}, 2
    s_and_b32 s3, s25, 3
    s_add_u32 s{sR}, s{sR}, s3
    s_and_b32 s{sC}, s24, 1
    s_mul_i32 s{sC}, s{sC}, 6
    s_lshr_b32 s3, s25, 2
    s_add_u32 s{sC}, s{sC}, s3
    s_mov_b32 s{sXo}, {sum(v << (4 * i) for i, v in enumerate(START[:8])):#x}
    s_mov_b32 s{sXo + 1}, {sum(v << (4 * i) for i, v in enumerate(START[8:])):#x}
    s_lshl_b32 s3, s{sC}, 2
    s_lshr_b64 s[{sXo}:{sXo + 1}], s[{sXo}:{sXo + 1}], s3
    s_and_b32 s{sROT}, s{sXo}, 15
    s_lshl_b32 s3, s{sR}, 1
    s_add_u32 s3, s3, s{sROT}
    s_mul_i32 s{sROT}, s3, 57
    s_lshr_b32 s{sROT}, s{sROT}, 9
    s_mul_i32 s{sROT}, s{sROT}, 9
    s_sub_u32 s{sROT}, s3, s{sROT}
    v_lshrrev_b32 v1, 6, v0
    v_and_b32 v{LANE}, 63, v0
    v_readfirstlane_b32 s{sWV}, v1""")
    XA, XB, XR = ACC0, ACC0 + 1, ACC0 + 2
    A(f"""v_lshrrev_b32 v1, 3, v{LANE}
    v_mul_u32_u24 v{XA}, 1152, v1
    v_lshrrev_b32 v1, 4, v{LANE}
    v_and_b32 v2, 7, v{LANE}
    v_xor_b32 v1, v1, v2
    v_xor_b32 v2, 4, v1
    v_lshl_add_u32 v{XB}, v2, 4, v{XA}
    v_add_u32 v{XB}, {8 * 1152 - 1024}, v{XB}
    v_lshl_add_u32 v{XA}, v1, 4, v{XA}
    s_lshl_b32 s{sKT}, s{sR}, 2
    s_add_u32 s{sKT}, s{sKT}, s{sWV}
    s_mul_i32 s25, s{sKT}, {32 * 1152}
    s_lshl_b32 s{sM0}, s{sWV}, 11""")
    def col(p):
        A(f"""s_add_u32 s3, s{sROT}, {p}
        s_cmp_ge_u32 s3, 9
        s_cselect_b32 s{sWo + p}, 9, 0
        s_sub_u32 s{sWo + p}, s3, s{sWo + p}
        s_lshl_b32 s3, s{sWo + p}, 7
        s_add_u32 s{sXo + p}, s3, s25""")
    col(0)
    A("s_waitcnt lgkmcnt(0)")
    A.many(srd(sX, 4, 5, S * D * 2))
    def x_dma(p):
        out = []
        for hi in range(2):
            g, b = dma_pair(f"s_add_u32 m0, s{sM0}, {8192 * (2 * p + hi)}", [f"s_add_u32 s{sSEL1}, s{sXo + p}, {16 * 1152 * hi}"], f"s{sSEL1}", XA, XB, sX, f"X{p}")
            out += g + [b]
        return out
    for p in range(3):
        A.many(x_dma(p)); col(p + 1)
    for p in range(4, 9): col(p)
    A.many(srd(sWS, 22, 23, WS_USED))
    A(f"""s_mov_b32 s{sW + 2}, {D * 3 * D * 2}
    s_movk_i32 s{sSTR}, 3456
    s_cmp_ge_u32 s{sC}, 9
    s_cselect_b32 s{sW}, s20, s6
    s_cselect_b32 s{sW + 1}, s21, s7
    s_cselect_b32 s{sW + 2}, {D * D * 2}, s{sW + 2}
    s_cselect_b32 s{sSTR}, 1152, s{sSTR}
    s_cselect_b32 s3, 9, 0
    s_cselect_b32 s{sOOB}, 0x40000000, 0
    s_and_b32 s{sW + 1}, s{sW + 1}, 0xffff
    s_mov_b32 s{sW + 3}, 0x20000
    s_sub_u32 s3, s{sC}, s3
    s_mul_i32 s3, s3, 384
    s_lshl_b32 s4, s{sSTR}, 6
    s_mul_i32 s5, s{sKT}, 36864
    s_lshl_b32 s6, s{sWo}, 12
    s_add_u32 s5, s5, s6
    s_add_u32 s5, s5, s{sOOB}
    s_add_u32 s6, s5, {OFF_XF}
    s_add_u32 s7, s5, {OFF_XN}""")
    for p in range(9):
        A(f"s_mul_i32 s{sWo + p}, s{sWo + p}, s4\ns_add_u32 s{sWo + p}, s{sWo + p}, s3")
    A(f"s_lshl_b32 s25, s{sWV}, 4")
    A.many(lane_consts_wdma(WA, WB, 1, LANE, 25, sSTR, 3))
    A.many(lane_consts_tr(TRB, False, 1, LANE))
    A(f"""v_and_b32 v1, 31, v{LANE}
    v_lshrrev_b32 v{VH}, 5, v{LANE}
    v_lshrrev_b32 v2, 4, v1
    v_lshlrev_b32 v2, 13, v2
    v_add_u32 v2, s{sM0}, v2
    v_and_b32 v3, 15, v1
    v_lshl_add_u32 v2, v3, 7, v2
    v_bfe_u32 v3, v1, 1, 3
    v_xor_b32 v3, v3, v{VH}""")
    for jj in range(4):
        A(f"v_xor_b32 v4, {2 * jj}, v3\nv_lshl_add_u32 v{XR + jj}, v4, 4, v2")
    SUM = ACC0 + 8
    A(f"""v_lshlrev_b32 v{LA}, 4, v{LANE}
    v_lshlrev_b32 v{VB}, 4, v1
    s_mov_b32 s{sONES}, 0x3f803f80""")
    for i in range(4): A(f"v_mov_b32 v{SUM + i}, 0")
    def stats(p):
        out = []
        for i in range(16):
            r = X + 16 * p + i
            out += [f"v_dot2_f32_bf16 v{SUM + (i & 1)}, v{r}, s{sONES}, v{SUM + (i & 1)}",
                    f"v_dot2_f32_bf16 v{SUM + 2 + (i & 1)}, v{r}, v{r}, v{SUM + 2 + (i & 1)}"]
        return out
    for p in range(9):
        if p in (4, 8):
            for jj in range(4): A(f"v_add_u32 v{XR + jj}, 0x10000, v{XR + jj}")
        if p == 0: A(";stamp 0")
        A(f"@waitvm X{p}")
        if p in (0, 4, 8): A(f";stamp {1 + p // 4}")
        for jj in range(4): A(f"ds_read_b128 {vr(X + 16 * p + 4 * jj, 4)}, v{XR + jj} offset:{16384 * (p % 4)}")
        if p < 6: A.many(x_dma(p + 3))
        if p >= 6:
            for b in (2 * p - 12, 2 * p - 11): A.many(flat(w_block(b)))
        if p: A.many(stats(p - 1))
        if p == 1:
            for i in range(16): A(f"v_mov_b32 v{ACC1 + 16 + i}, v{X + i}")
        A("s_waitcnt lgkmcnt(0)")
    A.many(stats(8))
    m, q = SUM, SUM + 2
    A(f"""s_nop 2
    v_add_f32 v{m}, v{m}, v{m + 1}
    v_add_f32 v{q}, v{q}, v{q + 1}
    v_mov_b32 v{m + 1}, v{m}
    v_mov_b32 v{q + 1}, v{q}
    s_nop 1
    v_permlane32_swap_b32 v{m}, v{m + 1}
    v_permlane32_swap_b32 v{q}, v{q + 1}
    v_add_f32 v{m}, v{m}, v{m + 1}
    v_add_f32 v{q}, v{q}, v{q + 1}
    v_mul_f32 v{NB}, {f2u(-1.0 / D):#x}, v{m}
    v_mul_f32 v{q}, {f2u(1.0 / D):#x}, v{q}
    v_fma_f32 v{q}, -v{NB}, v{NB}, v{q}
    v_max_f32 v{q}, 0, v{q}
    v_add_f32 v{m}, {f2u(EPS):#x}, v{q}
    v_mul_f32 v{m + 1}, {f2u(EPS):#x}, v{m}
    v_add_f32 v{m + 1}, v{m + 1}, v{q}
    s_cmp_ge_u32 s{sC}, 9
    s_cselect_b64 vcc, -1, 0
    v_cndmask_b32 v{m}, v{m}, v{m + 1}, vcc
    v_rsq_f32 v{RHO}, v{m}
    s_nop 0
    v_mul_f32 v{NB}, v{NB}, v{RHO}
    s_cbranch_scc1 L1_w1
    s_cmp_ge_u32 s{sC}, 6
    s_cbranch_scc1 L1_v""")
    return A

def main(A, swap, epi, extra1, stamps=True):
    A(";stamp 4\n@waitvm W0\ns_barrier\n;stamp 5" if stamps else "@waitvm W0\ns_barrier")
    A.many(first_reads(FR, TRB, 512))
    A.many(center(0) + center(1))
    gaps = {}
    for ks in range(2, 36):
        g = 2 * (ks - 2); ops = center(ks)
        gaps[g], gaps[g + 1] = (ops[:10], ops[10:]) if g % 24 != 18 else (ops, [])
    pace(gaps, w_block, 6, [(b, 0 if b < 18 else refill(b)) for b in range(6, 27)], 6, 0)
    spread(gaps, [x for jj in range(4) for x in fm_store(ACC1 + 16 + 4 * jj, jj, 6, ACC1 + 16 + 4 * jj)], 68, 72)
    spread(gaps, epi(0), 72 + 4, 72 + (50 if extra1 else 72)); spread(gaps, extra1, 72 + 50, 144)
    spread(gaps, epi(1), 144 + 4, 216)
    if stamps:
        for p in range(3): gaps.setdefault(72 * p + 71, []).append(f";stamp {6 + p}")
    A.many(steps(0, 108, 108, FR, TRB, 512, breg, acc, swap, gaps))
    A("s_nop 11")
    A.many(flat(epi(2)))
    if stamps: A(";stamp 9")
    A("s_endpgm")

def qk(C):
    A = C.fork(); A("L1_qk:")
    A(f"""s_movk_i32 s4, {OFF_Q}
    s_cmp_ge_u32 s{sC}, 3
    s_cselect_b32 s25, 1.0, {f2u(QSCALE):#x}
    s_cselect_b32 s4, {OFF_KV}, s4
    s_cselect_b32 s5, 3, 0
    s_mul_i32 s3, s{sKT}, {REC}
    s_add_u32 s3, s3, s4
    v_add_u32 v{VB}, s3, v{VB}
    s_sub_u32 s5, s{sC}, s5
    s_cmp_eq_u32 s5, 1
    s_cbranch_scc1 L1_tab1
    s_cmp_eq_u32 s5, 2
    s_cbranch_scc1 L1_tab2""")
    for cp in range(3):
        A.tracing = cp == 0
        if cp: A(f"L1_tab{cp}:")
        for q in range(24):
            c0, c1 = qk_const(48 * cp + 2 * q), qk_const(48 * cp + 2 * q + 1)
            A(f"s_mov_b32 s{sC0 + q}, {c0}\ns_mov_b32 s{sDF + q}, {(c1 - c0) & 0xffffffff:#x}")
        if cp < 2: A("s_branch L1_tabx")
    A.tracing = True
    A("L1_tabx:")
    def epi(st):
        out = []
        for T in range(2):
            for g in range(4):
                r = acc(st, T) + 4 * g; q = 8 * st + 4 * T + g; t = MA + (g & 1)
                out += [f"v_mul_f32 v{r + i}, s25, v{r + i}" for i in range(4)]
                out += [f"v_cvt_pk_bf16_f32 v{r}, v{r}, v{r + 1}", f"v_cvt_pk_bf16_f32 v{r + 1}, v{r + 2}, v{r + 3}",
                        f"v_mad_i32_i24 v{t}, v{VH}, s{sDF + q}, v{VB}",
                        f"buffer_store_dwordx2 {vr(r, 2)}, v{t}, {sr(sWS, 4)}, s{sC0 + q} offen"]
        return out
    main(A, False, epi, [x for jj in range(4) for x in fm_store(X + 4 * jj, jj, 7, T0)], False)
    return A

def vv(C):
    A = C.fork(); A("L1_v:")
    A(f"""s_mul_i32 s3, s{sKT}, {REC}
    s_add_u32 s3, s3, {OFF_KV + V_OFF}
    v_mul_u32_u24 v{VB}, {V_HALF}, v{VH}
    v_add_u32 v{VB}, s3, v{VB}
    s_sub_u32 s4, s{sC}, 6
    s_mul_i32 s4, s4, 192
    v_and_b32 v{ADB}, 31, v{LANE}
    v_add_u32 v{ADB}, s4, v{ADB}
    s_mov_b32 s4, {PS}
    s_mov_b32 s5, {V_HEAD}
    s_cmp_eq_u32 s{sC}, 6
    s_cselect_b32 s25, s3, 0x40000000""")
    def epi(st):
        out = []
        for T in range(2):
            r = acc(st, T); a, d = MA, MB; ad = NB + T
            out += [f"v_add_u32 v{d}, {64 * st + 32 * T}, v{ADB}", f"v_mul_u32_u24 v{a}, 3641, v{d}", f"v_lshrrev_b32 v{a}, 16, v{a}",
                    f"v_mad_i32_i24 v{d}, v{a}, -18 + 0, v{d}".replace("-18 + 0", "s52"),
                    f"v_lshl_add_u32 v{ad}, v{d}, 4, v{VB}", f"v_and_b32 v{d}, 1, v{a}", f"v_mad_u32_u24 v{ad}, v{d}, s5, v{ad}",
                    f"v_lshrrev_b32 v{a}, 1, v{a}", f"v_mad_u32_u24 v{ad}, v{a}, s4, v{ad}"]
            for s in range(2):
                out += [f"v_cvt_pk_bf16_f32 v{r + 8*s + i}, v{r + 8*s + 2*i}, v{r + 8*s + 2*i + 1}" for i in range(4)]
                out += [f"buffer_store_dwordx4 {vr(r + 8*s, 4)}, v{ad}, {sr(sWS, 4)}, 0 offen offset:{V_STEP * s}"]
        return out
    A("s_mov_b32 s52, -18")
    xn = []
    for jj in range(4): xn += fm_store(X + 4 * jj, jj, 7, T0)
    o = T0
    xn += [f"v_mov_b32 v{o + i}, 0x3f803f80" for i in range(4)]
    xn += [f"v_lshrrev_b32 v{MA}, 3, v{LANE}", f"v_mul_u32_u24 v{MA}, s4, v{MA}", f"v_bfe_u32 v{MB}, v{LANE}, 2, 1",
           f"v_mad_u32_u24 v{MA}, v{MB}, s5, v{MA}", f"v_and_b32 v{MB}, 3, v{LANE}",
           f"v_mul_u32_u24 v{MB}, {V_HALF}, v{MB}", f"v_add_u32 v{MA}, v{MA}, v{MB}",
           f"buffer_store_dwordx4 {vr(o, 4)}, v{MA}, {sr(sWS, 4)}, s25 offen offset:{16 * 18}",
           f"v_add_u32 v{MA}, {8 * PS}, v{MA}",
           f"buffer_store_dwordx4 {vr(o, 4)}, v{MA}, {sr(sWS, 4)}, s25 offen offset:{16 * 18}"]
    main(A, True, epi, xn)
    return A

def w1(C):
    A = C.fork(); A("L1_w1:")
    RA, RB_, AA, AB = MA, MB, VB, ADB
    A(f"""s_sub_u32 s3, s{sC}, 9
    s_mul_i32 s4, s3, 12288
    s_add_u32 s52, s4, {OFF_HS}
    s_add_u32 s53, s52, 4096
    s_add_u32 s54, s52, 8192
    s_mul_i32 s4, s3, 3
    s_sub_u32 s55, 9, s4
    s_cmp_eq_u32 s3, 1
    s_cselect_b32 s4, -1, 1
    s_cselect_b32 s5, 2, -1
    s_cmp_eq_u32 s3, 2
    s_cselect_b32 s4, 2, s4
    s_cselect_b32 s5, -2, s5
    s_lshl_b32 s3, s{sKT}, 5
    s_add_u32 s4, s4, s3
    s_add_u32 s5, s5, s3
    s_mov_b32 s56, {f2u(-GK2):#x}
    s_mov_b32 s57, 36864
    s_movk_i32 s58, 0x800
    v_mov_b32 v{KADD}, {f2u(-GK1):#x}
    v_mov_b32 v{T0 + 3}, 1.0
    v_and_b32 v{T0}, 31, v{LANE}""")
    for sh, rho, ad in ((4, RA, AA), (5, RB_, AB)):
        A(f"""v_add_u32 v{T0 + 1}, s{sh}, v{T0}
        v_cmp_gt_u32 vcc, s58, v{T0 + 1}
        v_and_b32 v{T0 + 1}, 0x7ff, v{T0 + 1}
        v_lshrrev_b32 v{T0 + 2}, 5, v{T0 + 1}
        v_cndmask_b32 v{rho}, 0, v{T0 + 3}, vcc
        v_mul_u32_u24 v{ad}, s57, v{T0 + 2}
        v_and_b32 v{T0 + 1}, 31, v{T0 + 1}
        v_lshl_add_u32 v{ad}, v{T0 + 1}, 4, v{ad}
        v_lshl_add_u32 v{ad}, v{VH}, 9, v{ad}""")
    def epi(st):
        out = []
        for T in range(2):
            for s in range(2):
                r = acc(st, T) + 8 * s; jl = 4 * st + 2 * T + s; ad = T0 + 2 + s
                out += [[f"s_cmp_lt_u32 {jl}, s55", "s_cselect_b64 s[60:61], -1, 0", f"v_cndmask_b32 v{RHO}, v{RB_}, v{RA}, s[60:61]",
                         f"v_cndmask_b32 v{ad}, v{AB}, v{AA}, s[60:61]"]]
                for i in range(4):
                    a, b = r + 2 * i, r + 2 * i + 1
                    out += [f"v_mul_f32 v{a}, v{RHO}, v{a}", f"v_mul_f32 v{b}, v{RHO}, v{b}"]
                    out += gelu_pair(a, b, T0, T0 + 1, "s56", f"v{KADD}")
                    out += [f"v_cvt_pk_bf16_f32 v{r + i}, v{a}, v{b}"]
                out += [f"buffer_store_dwordx4 {vr(r, 4)}, v{ad}, {sr(sWS, 4)}, s{52 + st} offen offset:{1024 * (2 * T + s)}" + (" sc1" if st < 2 else "")]
        return out
    main(A, False, epi, [])
    return A

def helper(code_from, code_pieces, entry):
    A = Asm(); A.trace = list(entry); A("L1_helper:")
    A(f"""s_load_dwordx2 s[8:9], s[0:1], 16
    s_load_dwordx4 s[12:15], s[0:1], 40
    s_load_dwordx2 s[16:17], s[0:1], 56
    s_sub_u32 s25, s25, 24
    s_getpc_b64 s[36:37]
L1_pch:
    s_sub_u32 s36, s36, L1_pch-L1_qk
    s_subb_u32 s37, s37, 0
    s_lshl_b32 s3, s25, 13
    v_lshl_add_u32 v1, v0, 5, s3
    global_load_dword v4, v1, s[36:37]
    v_mul_u32_u24 v1, 171, v0
    v_lshrrev_b32 v1, 10, v1
    v_mul_u32_u24 v2, 6, v1
    v_sub_u32 v2, v0, v2
    s_mul_i32 s3, s25, 72
    v_add_u32 v1, s3, v1
    s_and_b32 s26, s24, 1
    s_mul_i32 s26, s26, 6
    v_add_u32 v2, s26, v2
    v_cmp_gt_u32 vcc, 9, v2
    s_movk_i32 s29, 216
    v_cmp_gt_u32 s[30:31], s29, v0
    v_mul_u32_u24 v3, 384, v2
    v_mad_u32_u24 v5, v1, s27, v3
    v_mov_b32 v7, 0x40000000
    s_waitcnt lgkmcnt(0)""".replace("    v_mad_u32_u24 v5, v1, s27, v3\n", "    s_movk_i32 s27, 3456\n    s_movk_i32 s28, 1152\n    v_mad_u32_u24 v5, v1, s27, v3\n    v_mad_u32_u24 v6, v1, s28, v3\n    v_subrev_u32 v6, 3456, v6\n"))
    A(f"""v_cndmask_b32 v5, v7, v5, vcc
    v_cndmask_b32 v6, v6, v7, vcc
    v_cndmask_b32 v5, v7, v5, s[30:31]
    v_cndmask_b32 v6, v7, v6, s[30:31]""")
    A.many(srd(40, 6, 7, D * 3 * D * 2)); A.many(srd(44, 20, 21, D * D * 2))
    A.many(srd(48, 8, 9, D * D * 2)); A.many(srd(52, 12, 13, D * D * 2))
    A(f"s_mov_b32 s3, {36 * 3456}\ns_mov_b32 s4, {36 * 1152}")
    for st in range(3):
        A(f"""buffer_load_dword v4, v5, s[40:43], 0 offen offset:{128 * st}
        buffer_load_dword v4, v6, s[44:47], 0 offen offset:{128 * st}
        buffer_load_dword v4, v5, s[40:43], s3 offen offset:{128 * st}
        buffer_load_dword v4, v6, s[44:47], s4 offen offset:{128 * st}""")
    A(f"""s_lshl_b32 s3, s24, 3
    s_add_u32 s3, s3, s25
    s_mul_i32 s5, s3, {81 * 128}
    v_lshlrev_b32 v1, 7, v0
    v_cmp_gt_u32 vcc, 81, v0
    s_nop 1
    v_cndmask_b32 v1, v7, v1, vcc
    buffer_load_dword v4, v1, s[52:55], s5 offen
    buffer_load_dword v4, v1, s[48:51], s5 offen""")
    A.many(srd(40, 14, 15, D * F * 2)); A.many(srd(44, 16, 17, D * F * 2))
    A(f"""v_mul_u32_u24 v1, 57, v0
    v_lshrrev_b32 v1, 9, v1
    v_mul_u32_u24 v2, 9, v1
    v_sub_u32 v2, v0, v2
    v_mul_u32_u24 v1, 9216, v1
    v_lshl_add_u32 v1, v2, 7, v1
    v_cndmask_b32 v1, v7, v1, s[30:31]
    v_lshlrev_b32 v2, 7, v0
    v_cndmask_b32 v2, v7, v2, s[30:31]
    s_mul_i32 s4, s3, {72 * 1152}
    s_mul_i32 s3, s25, {72 * 9216}
    s_mul_i32 s5, s24, 1152
    s_add_u32 s3, s3, s5""")
    for i in range(3):
        A(f"buffer_load_dword v4, v1, s[40:43], s3 offen\ns_add_u32 s3, s3, {24 * 9216}")
    for i in range(3):
        A(f"buffer_load_dword v4, v2, s[44:47], s4 offen\ns_add_u32 s4, s4, {216 * 128}")
    A("L1_end:\ns_endpgm")
    return A

def build(code_from, code_pieces):
    C = common("k1")
    parts = [qk(C), vv(C), w1(C)]
    Hh = helper(code_from, code_pieces, C.trace[:C.trace.index('s_cbranch_scc1 L1_helper')])
    errs = []
    for n, p in zip(("qk", "v", "w1", "h"), parts + [Hh]): errs += check(p.trace, "k1." + n)
    return C.text() + "".join(p.text() for p in parts) + Hh.text(), errs
```

```python
import sys, importlib
sys.path.insert(0, "work")
from layout import *
NAME = "parallel_sum__softmax_full_mha__mixer_s_mlp__prompt"
HEADER = open(f"cdna_kernels/{NAME}.s.ref").read().split("; Override launch")[0]

def kernel(name, body):
    return f".globl {name}\n.p2align 8\n.type {name},@function\n{name}:\n{body}"
def desc(name, vgpr, accum):
    return f""".amdhsa_kernel {name}
  .amdhsa_next_free_vgpr {vgpr}
  .amdhsa_next_free_sgpr 102
  .amdhsa_accum_offset {accum}
  .amdhsa_group_segment_fixed_size 0
  .amdhsa_kernarg_size 88
  .amdhsa_user_sgpr_count 2
  .amdhsa_user_sgpr_kernarg_segment_ptr 1
  .amdhsa_system_sgpr_workgroup_id_x 1
.end_amdhsa_kernel
"""
OFF_STAMP = 48 << 20
def stamped(t, idx, v):
    import re
    entry = f" s_memrealtime s[4:5]\n s_memtime s[6:7]\n s_waitcnt lgkmcnt(0)\n v_mov_b32 v{v}, 0\n v_writelane_b32 v{v}, s4, 0\n v_writelane_b32 v{v}, s6, 1\n v_mov_b32 v{v+1}, v0\n"
    entry += "".join(f" s_mov_b32 s{64+2*i}, 0\n" for i in range(18))
    ex = f""" s_waitcnt vmcnt(0) lgkmcnt(0)
 s_memrealtime s[4:5]
 s_memtime s[12:13]
 s_load_dwordx2 s[6:7], s[0:1], 80
 s_waitcnt lgkmcnt(0)
 s_mov_b32 s8, s6
 s_and_b32 s9, s7, 0xffff
 s_mov_b32 s10, {OFF_STAMP + (1 << 20)}
 s_mov_b32 s11, 0x20000
 s_lshl_b32 s3, s2, 9
 s_add_u32 s3, s3, {OFF_STAMP + idx * 262144}
 v_writelane_b32 v{v}, s4, 2
 v_writelane_b32 v{v}, s12, 3
""" + "".join(f" v_writelane_b32 v{v}, s{64+2*i}, {4+i}\n" for i in range(18)) + f""" v_lshrrev_b32 v0, 6, v{v+1}
 v_lshlrev_b32 v0, 7, v0
 v_and_b32 v{v+1}, 63, v{v+1}
 v_cmp_gt_u32 vcc, 32, v{v+1}
 v_lshl_add_u32 v0, v{v+1}, 2, v0
 s_and_saveexec_b64 s[4:5], vcc
 buffer_store_dword v{v}, v0, s[8:11], s3 offen
 s_endpgm
"""
    t = re.sub(r" ;stamp (\d+)\n", lambda m: f" s_memtime s[{64+2*int(m.group(1))}:{65+2*int(m.group(1))}]\n", t)
    return entry + t.replace(" s_endpgm\n", ex)
def build(which=("k1", "k2", "k3", "k4"), stamp=False):
    errs = []; ks = []
    import k1
    t, e = k1.build("L_after_k1", 2); errs += e
    ks.append(("k1_kernel", t + "L_after_k1:\n", 256, 256, 147456, 256, 256))
    for nm in ("k2", "k3", "k4"):
        if nm in which:
            m = importlib.import_module(nm); t, e, grid, lds, vg, ac = m.build(); errs += e
            ks.append((nm + "_kernel", t, grid, 256, lds, vg, ac))
    if stamp:
        ks = [(n, stamped(t, i, 94 if n[:2] in ("k2", "k4") else 252), *r) for i, (n, t, *r) in enumerate(ks)]
    import re
    ks = [(n, re.sub(r" ;stamp \d+\n", "", t), *r) for n, t, *r in ks]
    s = HEADER
    for n, t, g, b, lds, vg, ac in ks: s += f"; @launch kernel={n} grid=({g},1,1) block=({b},1,1) lds={lds}\n"
    s += '.amdgcn_target "amdgcn-amd-amdhsa--gfx950"\n.text\n'
    for n, t, *_ in ks: s += kernel(n, t)
    s += ".p2align 8\nL_text_end:\n.fill 18432, 4, 0xbf810000\n"
    s += '.section .rodata,"a"\n'
    for n, t, g, b, lds, vg, ac in ks: s += ".p2align 6\n" + desc(n, vg, ac)
    return s, errs
if __name__ == "__main__":
    which = sys.argv[2].split(",") if len(sys.argv) > 2 else ("k1", "k2", "k3", "k4")
    s, errs = build(which, len(sys.argv) > 3)
    for e in errs[:30]: print(e)
    print(len(errs), "hazard findings;", len(s), "bytes of source")
    open(sys.argv[1] if len(sys.argv) > 1 else f"cdna_kernels/{NAME}.s", "w").write(s)
```
